```python
import torch

def _softmax(x, axis=-1):
    return torch.softmax(x, dim=axis)
def _gelu(x):
    return torch.nn.functional.gelu(x, approximate="tanh")
def _silu(x):
    return torch.nn.functional.silu(x)
def _sigmoid(x):
    return torch.sigmoid(x)
def _layernorm(x, axis=-1, eps=1e-5):
    m = x.mean(dim=axis, keepdim=True)
    v = x.var(dim=axis, keepdim=True, unbiased=False)
    return (x - m) / torch.sqrt(v + eps)
def _scatter_add(tgt, idx, src, axis=0):
    return tgt.clone().index_add_(axis, idx, src)
def _segment_sum(src, seg, n):
    out = torch.zeros((n,) + src.shape[1:], dtype=src.dtype)
    return out.index_add_(0, seg, src)
def _pad(x, pw):
    flat = tuple(v for pair in reversed(pw) for v in pair)
    return torch.nn.functional.pad(x, flat)

kernel_name = 'standalone__glu_gated_geglu__sampling'

def setup_inputs():

    _w = (lambda a: (lambda t: t.to(torch.bfloat16) if t.is_floating_point() else t)(torch.as_tensor(a)))
    B, S, Dm, Df = 8, 8, 1024, 3584
    return {
        "x": _w((lambda *s: torch.randn(*s, dtype=torch.bfloat16) * 0.05)(B, S, Dm)),
        "w_gate": _w((lambda *s: torch.randn(*s, dtype=torch.bfloat16) * 0.05)(Dm, Df) * (Dm ** -0.5)),
        "w_up": _w((lambda *s: torch.randn(*s, dtype=torch.bfloat16) * 0.05)(Dm, Df) * (Dm ** -0.5)),
        "w_down": _w((lambda *s: torch.randn(*s, dtype=torch.bfloat16) * 0.05)(Df, Dm) * (Df ** -0.5)),
    }

def reference(x, w_gate, w_up, w_down):
    g = torch.einsum("bsd,df->bsf", x, w_gate)
    u = torch.einsum("bsd,df->bsf", x, w_up)
    h = _gelu(g) * u
    return torch.einsum("bsf,fd->bsd", h, w_down)
```

```python
HEADER = """; Kernarg layout for this problem (56 bytes, ptrs only, base s[0:1]):
"""
NAME = 'standalone__glu_gated_geglu__sampling_kernel'
STAMP_OFF = 200 << 20


class Asm:
    def __init__(self):
        self.lines = []

    def __call__(self, s):
        for l in s.split('\n'):
            l = l.strip()
            if l:
                self.lines.append(('' if l.endswith(':') else '    ') + l)

    def text(self):
        return '\n'.join(self.lines) + '\n'


def kernel_text(name, body):
    return f""".globl {name}
.p2align 8
.type {name},@function
{name}:
{body}"""


def descriptor(name, vgpr, accum, sgpr=96, extra=''):
    return f""".amdhsa_kernel {name}
  .amdhsa_next_free_vgpr {vgpr}
  .amdhsa_next_free_sgpr {sgpr}
  .amdhsa_accum_offset {accum}
  .amdhsa_group_segment_fixed_size 0
  .amdhsa_kernarg_size 56
  .amdhsa_user_sgpr_count 2
  .amdhsa_user_sgpr_kernarg_segment_ptr 1
  .amdhsa_system_sgpr_workgroup_id_x 1
{extra}.end_amdhsa_kernel
"""


def single(body, grid, block, lds, vgpr, accum, sgpr=96, extra=''):
    return (HEADER + f'; @launch grid=({grid},1,1) block=({block},1,1) lds={lds}\n'
            + '.amdgcn_target "amdgcn-amd-amdhsa--gfx950"\n.text\n'
            + kernel_text(NAME, body) + '.section .rodata,"a"\n.p2align 6\n'
            + descriptor(NAME, vgpr, accum, sgpr, extra))


def multi(kernels):
    s = HEADER
    for k in kernels:
        s += f"; @launch kernel={k['name']} grid=({k['grid']},1,1) block=({k['block']},1,1) lds={k['lds']}\n"
    s += '.amdgcn_target "amdgcn-amd-amdhsa--gfx950"\n.text\n'
    for k in kernels:
        s += kernel_text(k['name'], k['body'])
    s += '.section .rodata,"a"\n'
    for k in kernels:
        s += '.p2align 6\n' + descriptor(k['name'], k['vgpr'], k['accum'], k.get('sgpr', 96), k.get('extra', ''))
    return s
```

```python
import sys
from asmlib import *

WSZ = 7340032
HOFF = 0
POFF = 1 << 20
WS_SZ = 4 << 20
X, WG, WU, WD, WS, ST, OUT = 20, 24, 28, 32, 36, 40, 44


def srd(r):
    return f's[{r}:{r+3}]'


class Cfg:
    def __init__(self, **kw):
        self.nt1 = 'nt'; self.nt2 = 'nt'; self.rot = True; self.stamps = False; self.slots = 4
        self.sc = ''
        self.__dict__.update(kw)


def stamp(a, c, j):
    if c.stamps:
        a(f's_memrealtime s[{64+2*j}:{65+2*j}]')


def prologue(a, c, nwg, need):
    if c.stamps:
        a('s_memrealtime s[64:65]')
    a(f"""
    s_cmp_ge_u32 s2, {nwg}
    s_cbranch_scc1 L_end{c.tag}
    """)
    info = {'x': (X, 0, 131072), 'wg': (WG, 8, WSZ), 'wu': (WU, 16, WSZ), 'wd': (WD, 24, WSZ), 'out': (OUT, 32, 131072), 'ws': (WS, 48, WS_SZ)}
    for n in need:
        r, o, sz = info[n]
        a(f's_load_dwordx2 s[{r}:{r+1}], s[0:1], {o}')
    if c.stamps:
        a('s_load_dwordx2 s[16:17], s[0:1], 48')
    a("""
    v_lshrrev_b32 v1, 6, v0
    v_and_b32 v0, 63, v0
    s_and_b32 s18, s2, 7
    v_readfirstlane_b32 s3, v1
    s_lshr_b32 s19, s2, 3
    """)
    for n in need:
        r, o, sz = info[n]
        a(f's_mov_b32 s{r+2}, {sz}\ns_mov_b32 s{r+3}, 0x00020000')
    if c.stamps:
        for j in range(1, 8):
            a(f's_mov_b64 s[{64+2*j}:{65+2*j}], 0')


def epilogue(a, c, slot0=0):
    if c.stamps:
        a(f"""
        s_waitcnt lgkmcnt(0)
        s_add_u32 s{ST}, s16, {STAMP_OFF}
        s_addc_u32 s{ST+1}, s17, 0
        s_mov_b32 s{ST+2}, {272*16*64}
        s_mov_b32 s{ST+3}, 0x00020000
        s_lshl_b32 s56, s2, 4
        s_add_u32 s56, s56, s3
        s_add_u32 s56, s56, {slot0}
        s_lshl_b32 s56, s56, 6
        v_mov_b32 v1, s56
        """)
        for j in range(16):
            a(f'v_mov_b32 v{4+j}, s{64+j}')
        a(f"""
        v_cmp_eq_u32 vcc, 0, v0
        s_and_saveexec_b64 s[58:59], vcc
        buffer_store_dwordx4 v[4:7], v1, {srd(ST)}, 0 offen
        buffer_store_dwordx4 v[8:11], v1, {srd(ST)}, 0 offen offset:16
        buffer_store_dwordx4 v[12:15], v1, {srd(ST)}, 0 offen offset:32
        buffer_store_dwordx4 v[16:19], v1, {srd(ST)}, 0 offen offset:48
        s_waitcnt vmcnt(0)
        """)
    a(f'L_end{c.tag}:\ns_endpgm')


def tr_bases(a, vb, rowsh, fx=None, add=None):
    a(f"""
    v_lshrrev_b32 v2, 4, v0
    v_bfe_u32 v3, v0, 2, 2
    v_lshlrev_b32 v4, {rowsh}, v2
    v_add_u32 v4, v4, v3
    v_lshlrev_b32 v4, 7, v4
    v_and_b32 v5, 3, v0
    v_lshl_add_u32 v4, v5, 3, v4
    v_bfe_u32 v5, v0, 3, 2
    v_lshlrev_b32 v5, 5, v5
    """)
    if fx is not None:
        a(f'v_xor_b32 v5, {fx}, v5')
    if add is not None:
        a(f'v_add_u32 v4, {add}, v4')
    for f in range(4):
        if f == 0:
            a(f'v_add_u32 v{vb}, v4, v5')
        else:
            a(f'v_xor_b32 v3, {32*f}, v5\nv_add_u32 v{vb+f}, v4, v3')


P1_X = 16
P1_B = 48
P1_A = 80


def p1_setup(a, c):
    R = c.slots * 8192
    a(f"""
    s_lshr_b32 s48, s19, 2
    s_mul_i32 s49, s18, 7
    s_add_u32 s48, s48, s49            ; ct
    s_and_b32 s49, s19, 3
    s_mul_i32 s50, s3, {256*7168}
    s_lshl_b32 s51, s48, 7
    s_add_u32 s50, s50, s51
    s_add_u32 s51, s50, {8*229376}     ; end
    s_mul_i32 s53, s3, {R}
    """)
    if c.rot:
        a(f's_mul_i32 s52, s49, {2*229376}\ns_add_u32 s52, s52, s50')
    else:
        a('s_mov_b32 s52, s50')
    a(f"""
    v_lshrrev_b32 v2, 3, v0
    v_mul_u32_u24 v6, 7168, v2
    v_and_b32 v3, 7, v0
    v_bfe_u32 v4, v0, 4, 1
    v_lshlrev_b32 v4, 1, v4
    v_xor_b32 v3, v3, v4
    v_lshl_add_u32 v6, v3, 4, v6
    v_xor_b32 v7, 64, v6
    v_and_b32 v2, 15, v0
    v_lshlrev_b32 v8, 11, v2
    v_lshrrev_b32 v3, 4, v0
    v_lshl_add_u32 v8, v3, 4, v8       ; x voffset
    s_lshl_b32 s54, s49, 15
    s_lshl_b32 s55, s3, 9
    s_add_u32 s54, s54, s55            ; x base
    """)


def p1_dma(a, c, step):
    slot = step % c.slots
    for i4 in range(4):
        if i4:
            a(f's_add_u32 s56, s52, {i4*57344}')
        so = 's56' if i4 else 's52'
        for mat, r in ((0, WG), (1, WU)):
            a(f's_add_u32 m0, s53, {slot*8192 + mat*4096 + i4*1024}')
            a(f's_nop 0')
            a(f'buffer_load_dwordx4 v{6 + (i4 & 1)}, {srd(r)}, {so} offen {c.nt1} lds')
    a(f's_add_u32 s52, s52, 229376')
    if c.rot:
        a('s_cmp_ge_u32 s52, s51\ns_cselect_b32 s52, s50, s52')


def p1_x(a, c):
    if c.rot:
        a('s_lshl_b32 s55, s49, 7')
    for s in range(8):
        if c.rot:
            a(f's_and_b32 s57, s55, 511\ns_add_u32 s57, s57, s54\ns_add_u32 s55, s55, 64')
            a(f'buffer_load_dwordx4 v[{P1_X+4*s}:{P1_X+4*s+3}], v8, {srd(X)}, s57 offen')
        else:
            a(f'buffer_load_dwordx4 v[{P1_X+4*s}:{P1_X+4*s+3}], v8, {srd(X)}, s54 offen offset:{64*s}')


def p1_main(a, c, extra_after=None):
    S = c.slots
    R = S * 8192
    p1_dma(a, c, 0)
    p1_x(a, c)
    for s in range(1, S):
        p1_dma(a, c, s)
    stamp(a, c, 1)
    tr_bases(a, 10, 3, add='s53')
    for i in range(32):
        a(f'v_mov_b32 v{P1_A+i}, 0')
    issued = [8 + 8] + [8] * (S - 1)
    for s in range(8):
        later = sum(issued[s + 1:])
        a(f's_waitcnt vmcnt({min(later, 63)})')
        slot = s % S
        for mat in range(2):
            for f in range(4):
                for h in range(2):
                    d = P1_B + (mat * 4 + f) * 4 + 2 * h
                    a(f'ds_read_b64_tr_b16 v[{d}:{d+1}], v{10+f} offset:{slot*8192 + mat*4096 + h*512}')
        a('s_waitcnt lgkmcnt(0)')
        if s + S < 8:
            p1_dma(a, c, s + S)
            issued.append(8)
        if extra_after and s in extra_after:
            fn, cnt = extra_after[s]
            fn()
            issued[-1] += cnt
        for m in range(8):
            acc = P1_A + 4 * m
            b = P1_B + 4 * m
            a(f'v_mfma_f32_16x16x32_bf16 v[{acc}:{acc+3}], v[{b}:{b+3}], v[{P1_X+4*s}:{P1_X+4*s+3}], v[{acc}:{acc+3}]')
    stamp(a, c, 2)


def gelu_mul(a, g, u, n, t):
    a('s_mov_b32 s56, 0xc0135761\ns_mov_b32 s57, 0xbdd2d3e8\ns_mov_b32 s58, 0xffff0000')
    for i in range(0, n, 2):
        a(f'v_cvt_pk_bf16_f32 v{t+i}, v{g+i}, v{g+i+1}')
        a(f'v_cvt_pk_bf16_f32 v{t+i+1}, v{u+i}, v{u+i+1}')
    for i in range(0, n, 2):
        a(f'v_lshlrev_b32 v{g+i}, 16, v{t+i}\nv_and_b32 v{g+i+1}, s58, v{t+i}')
        a(f'v_lshlrev_b32 v{u+i}, 16, v{t+i+1}\nv_and_b32 v{u+i+1}, s58, v{t+i+1}')
    a(f'v_mov_b32 v{t+n}, s56')
    for i in range(n):
        a(f'v_mul_f32 v{t+i}, v{g+i}, v{g+i}')
    for i in range(n):
        a(f'v_fma_f32 v{t+i}, v{t+i}, s57, v{t+n}')
    for i in range(n):
        a(f'v_mul_f32 v{t+i}, v{t+i}, v{g+i}')
    for i in range(n):
        a(f'v_exp_f32 v{t+i}, v{t+i}')
    for i in range(n):
        a(f'v_add_f32 v{t+i}, 1.0, v{t+i}')
    for i in range(n):
        a(f'v_rcp_f32 v{t+i}, v{t+i}')
    for i in range(n):
        a(f'v_mul_f32 v{g+i}, v{g+i}, v{t+i}')
    for i in range(0, n, 2):
        a(f'v_cvt_pk_bf16_f32 v{t+i}, v{g+i}, v{g+i+1}')
    for i in range(0, n, 2):
        a(f'v_lshlrev_b32 v{g+i}, 16, v{t+i}\nv_and_b32 v{g+i+1}, s58, v{t+i}')
    for i in range(n):
        a(f'v_mul_f32 v{g+i}, v{g+i}, v{u+i}')
    for i in range(0, n, 2):
        a(f'v_cvt_pk_bf16_f32 v{g+i//2}, v{g+i}, v{g+i+1}')


def p1_final(a, c):
    R = c.slots * 8192
    a(f"""
    v_lshlrev_b32 v2, 4, v0
    v_add_u32 v2, s53, v2
    s_and_b32 s56, s3, 1
    s_lshr_b32 s57, s3, 1
    v_and_b32 v3, 31, v0
    v_lshrrev_b32 v4, 5, v0
    s_lshl_b32 s58, s56, 9
    s_lshl_b32 s59, s57, 11
    s_add_u32 s58, s58, s59
    v_lshlrev_b32 v5, 4, v3
    v_lshl_add_u32 v9, v4, 10, v5
    v_add_u32 v9, s58, v9
    v_add_u32 v14, {2*R}, v9
    """)
    for m in range(8):
        a(f'ds_write_b128 v2, v[{P1_A+4*m}:{P1_A+4*m+3}] offset:{m*1024}')
    a(f"""
    v_lshl_add_u32 v15, v4, 3, v5
    s_mul_i32 s60, s49, 112
    s_lshl_b32 s61, s48, 1
    s_add_u32 s60, s60, s61
    s_add_u32 s60, s60, s57
    s_lshl_b32 s60, s60, 10
    s_lshl_b32 s61, s56, 9
    s_add_u32 s60, s60, s61
    s_add_u32 s60, s60, {HOFF}
    s_waitcnt lgkmcnt(0)
    s_barrier
    """)
    for w in range(4):
        for mat in range(2):
            d = 16 + (mat * 4 + w) * 4
            base = 9 if w < 2 else 14
            a(f'ds_read_b128 v[{d}:{d+3}], v{base} offset:{(w & 1)*R + mat*4096}')
    a('s_waitcnt lgkmcnt(0)')
    for mat in range(2):
        d = 16 + mat * 16
        for r in range(4):
            a(f'v_add_f32 v{d+r}, v{d+r}, v{d+4+r}\nv_add_f32 v{d+8+r}, v{d+8+r}, v{d+12+r}')
        for r in range(4):
            a(f'v_add_f32 v{d+r}, v{d+r}, v{d+8+r}')
    gelu_mul(a, 16, 32, 4, 48)
    a(f'buffer_store_dwordx2 v[16:17], v15, {srd(WS)}, s60 offen {c.sc}')


P2_W = 112
P2_H = 16
P2_A = 48


def p2_setup(a, c, ldsbase):
    a(f"""
    s_lshr_b32 s82, s19, 1             ; nt
    s_and_b32 s83, s19, 1              ; mh
    s_and_b32 s84, s3, 1               ; kh
    s_lshr_b32 s85, s3, 1              ; mf
    s_mul_i32 s80, s18, {448*2048}
    s_lshl_b32 s86, s82, 7
    s_add_u32 s80, s80, s86
    s_lshl_b32 s86, s84, 1
    s_add_u32 s86, s86, s85
    s_mul_i32 s81, s86, {14*1024}
    s_add_u32 s81, s81, {ldsbase}
    s_mul_i32 s86, s86, {14*8*2048}
    s_add_u32 s80, s80, s86
    v_lshrrev_b32 v2, 3, v0
    v_lshlrev_b32 v224, 11, v2
    v_and_b32 v3, 7, v0
    v_bfe_u32 v4, v0, 4, 2
    v_lshlrev_b32 v4, 1, v4
    v_xor_b32 v3, v3, v4
    v_lshl_add_u32 v224, v3, 4, v224
    """)


def p2_dma(a, c, lo, hi):
    for i in range(lo, hi):
        a(f's_add_u32 m0, s81, {i*1024}')
        a(f's_add_u32 s86, s80, {i*16384}')
        a(f'buffer_load_dwordx4 v224, {srd(WD)}, s86 offen {c.nt2} lds')


def p2_wfrags(a, c, ldsbase):
    a(f's_mul_i32 s86, s84, {7*4096}\ns_add_u32 s86, s86, {ldsbase}\ns_lshl_b32 s87, s84, 6')
    tr_bases(a, 10, 2, fx='s87', add='s86')
    for s in range(7):
        for f in range(4):
            for h in range(2):
                d = P2_W + (s * 4 + f) * 4 + 2 * h
                a(f'ds_read_b64_tr_b16 v[{d}:{d+1}], v{10+f} offset:{s*4096 + h*2048}')


def p2_haddr(a, c):
    a(f"""
    s_lshl_b32 s86, s83, 1
    s_add_u32 s86, s86, s85
    s_mul_i32 s86, s86, 112
    s_mul_i32 s87, s18, 14
    s_add_u32 s86, s86, s87
    s_mul_i32 s87, s84, 7
    s_add_u32 s86, s86, s87
    s_lshl_b32 s88, s86, 10
    s_add_u32 s88, s88, {HOFF}
    s_add_u32 s89, s88, 4096
    v_lshlrev_b32 v9, 4, v0
    """)


def p2_hload(a, c):
    for s in range(7):
        so = 's88' if s < 4 else 's89'
        a(f'buffer_load_dwordx4 v[{P2_H+4*s}:{P2_H+4*s+3}], v9, {srd(WS)}, {so} offen offset:{(s&3)*1024} {c.sc}')


def p2_mma(a, c, waits=True):
    for s in range(7):
        if waits:
            a(f's_waitcnt vmcnt({6-s})')
        for f in range(4):
            acc = P2_A + 4 * f
            w = P2_W + (s * 4 + f) * 4
            src = f'v[{acc}:{acc+3}]' if s else '0'
            a(f'v_mfma_f32_16x16x32_bf16 v[{acc}:{acc+3}], v[{w}:{w+3}], v[{P2_H+4*s}:{P2_H+4*s+3}], {src}')


def p2_store(a, c, ldsx):
    a(f"""
    s_lshl_b32 s86, s3, 11
    s_add_u32 s86, s86, {ldsx}
    s_xor_b32 s87, s3, 1
    s_lshl_b32 s87, s87, 11
    s_add_u32 s87, s87, {ldsx}
    v_add_u32 v2, s86, v9
    v_add_u32 v3, s87, v9
    s_lshl_b32 s86, s83, 4
    s_add_u32 s86, s86, s82
    s_lshl_b32 s86, s86, 3
    s_lshl_b32 s87, s3, 1
    s_add_u32 s86, s86, s87
    s_lshl_b32 s86, s86, 3
    s_add_u32 s86, s86, s18
    s_lshl_b32 s90, s86, 10
    s_add_u32 s90, s90, {POFF}
    s_add_u32 s91, s90, 8192
    s_nop 1
    ds_write_b128 v2, v[{P2_A+8}:{P2_A+11}]
    ds_write_b128 v2, v[{P2_A+12}:{P2_A+15}] offset:1024
    s_waitcnt lgkmcnt(0)
    s_barrier
    ds_read_b128 v[16:19], v3
    ds_read_b128 v[20:23], v3 offset:1024
    s_waitcnt lgkmcnt(0)
    """)
    for r in range(8):
        a(f'v_add_f32 v{16+r}, v{16+r}, v{P2_A+r}')
    a(f"""
    buffer_store_dwordx4 v[16:19], v9, {srd(WS)}, s90 offen {c.sc}
    buffer_store_dwordx4 v[20:23], v9, {srd(WS)}, s91 offen {c.sc}
    """)


def red_addr(a, c, tile, chunk):
    a(f"""
    s_lshl_b32 s92, {tile}, 3
    s_add_u32 s92, s92, {chunk}
    s_lshl_b32 s92, s92, 13
    s_add_u32 s92, s92, {POFF}
    s_add_u32 s93, s92, 4096
    s_lshr_b32 s94, {tile}, 4
    s_lshl_b32 s94, s94, 1
    s_lshr_b32 s95, {chunk}, 2
    s_add_u32 s94, s94, s95
    s_lshl_b32 s94, s94, 15
    s_and_b32 s95, {tile}, 15
    s_lshl_b32 s95, s95, 7
    s_add_u32 s94, s94, s95
    s_and_b32 s95, {chunk}, 3
    s_lshl_b32 s95, s95, 5
    s_add_u32 s94, s94, s95
    v_and_b32 v2, 15, v0
    v_lshlrev_b32 v14, 11, v2
    v_lshrrev_b32 v2, 4, v0
    v_lshl_add_u32 v14, v2, 3, v14
    v_lshlrev_b32 v9, 4, v0
    """)


def red_load(a, c):
    for j in range(8):
        so = 's92' if j < 4 else 's93'
        a(f'buffer_load_dwordx4 v[{16+4*j}:{19+4*j}], v9, {srd(WS)}, {so} offen offset:{(j&3)*1024} {c.sc}')


def red_fin(a, c):
    for st in (4, 8, 16):
        for b in range(16, 48, 2 * st):
            for r in range(4):
                a(f'v_add_f32 v{b+r}, v{b+r}, v{b+st+r}')
    a(f"""
    v_cvt_pk_bf16_f32 v16, v16, v17
    v_cvt_pk_bf16_f32 v17, v18, v19
    buffer_store_dwordx2 v[16:17], v14, {srd(OUT)}, s94 offen
    """)


EXTRA = '  .amdhsa_float_denorm_mode_32 3\n'


def gen_multi(name, **kw):
    ks = []
    c = Cfg(tag='1', **kw)
    a = Asm()
    prologue(a, c, 256, ['x', 'wg', 'wu', 'ws'])
    a('s_cmp_ge_u32 s19, 28\ns_cbranch_scc1 L_end1')
    p1_setup(a, c)
    a('s_waitcnt lgkmcnt(0)')
    p1_main(a, c)
    p1_final(a, c)
    a('s_waitcnt vmcnt(0)')
    stamp(a, c, 3)
    epilogue(a, c, 0)
    ks.append(dict(name='p1_kernel', body=a.text(), grid=256, block=256, lds=c.slots * 8192 * 4, vgpr=128, accum=128, extra=EXTRA))
    c = Cfg(tag='2', **kw)
    a = Asm()
    prologue(a, c, 256, ['wd', 'ws'])
    p2_setup(a, c, 0)
    p2_haddr(a, c)
    a('s_waitcnt lgkmcnt(0)')
    p2_dma(a, c, 0, 14)
    p2_hload(a, c)
    stamp(a, c, 1)
    a('s_waitcnt vmcnt(7)\ns_barrier')
    p2_wfrags(a, c, 0)
    a('s_waitcnt lgkmcnt(0)')
    p2_mma(a, c)
    stamp(a, c, 2)
    p2_store(a, c, 57344)
    a('s_waitcnt vmcnt(0)')
    stamp(a, c, 3)
    epilogue(a, c, 4)
    ks.append(dict(name='p2_kernel', body=a.text(), grid=256, block=256, lds=65536, vgpr=232, accum=232, extra=EXTRA))
    c = Cfg(tag='3', **kw)
    a = Asm()
    prologue(a, c, 64, ['ws', 'out'])
    a('s_lshr_b32 s48, s2, 1\ns_and_b32 s49, s2, 1\ns_lshl_b32 s49, s49, 2\ns_add_u32 s49, s49, s3')
    red_addr(a, c, 's48', 's49')
    a('s_waitcnt lgkmcnt(0)')
    red_load(a, c)
    a('s_waitcnt vmcnt(0)')
    red_fin(a, c)
    a('s_waitcnt vmcnt(0)')
    stamp(a, c, 3)
    epilogue(a, c, 8)
    ks.append(dict(name='red_kernel', body=a.text(), grid=64, block=256, lds=0, vgpr=64, accum=64, extra=EXTRA))
    open(name, 'w').write(multi(ks))


if __name__ == '__main__':
    gen_multi('m_nt.s')
    gen_multi('m_pl.s', nt1='', nt2='')
    gen_multi('m_pl_norot.s', nt1='', nt2='', rot=False)
    gen_multi('m_nt_st.s', stamps=True)
    gen_multi('m_pl_st.s', nt1='', nt2='', stamps=True)
    gen_multi('m_pl_norot_st.s', nt1='', nt2='', rot=False, stamps=True)
```

```python
import sys
from asmlib import *
from k import srd, gelu_mul, EXTRA, WSZ

HOFF = 0
POFF = 458752
WS_SZ = 4 << 20
DBG, X, WG, WU, WD, WS, ST, OUT = 12, 20, 24, 28, 32, 36, 40, 44
R = 32768
P1_X, P1_B, P1_A = 16, 48, 80
P2_W, P2_H, P2_A = 112, 16, 48
RED = 64
V_WD, V_L16, V_T2, V_FW, V_FR0, V_FR1, V_HS, V_FL, V_FO, V_XW, V_XR, V_OUT = 224, 225, 226, 230, 231, 232, 233, 234, 235, 236, 237, 238
SPIN = 96


class Cfg:
    def __init__(self, **kw):
        self.stamps = False
        self.w3 = True
        self.d3 = True
        self.dall = 0
        self.wdstep = 4
        self.__dict__.update(kw)


class Q:
    def __init__(self):
        self.ops = []

    def add(self, tag, n=1):
        self.ops += [tag] * n

    def wait(self, tag):
        last = max(i for i, t in enumerate(self.ops) if t == tag)
        return min(len(self.ops) - 1 - last, 63)


def stamp(a, c, j):
    if c.stamps:
        a(f's_memrealtime s[{64+2*j}:{65+2*j}]')


def tr_bases(a, vb, rowsh, fx=None, add=None):
    a(f"""
    v_lshrrev_b32 v2, 4, v0
    v_bfe_u32 v3, v0, 2, 2
    v_lshlrev_b32 v4, {rowsh}, v2
    v_add_u32 v4, v4, v3
    v_lshlrev_b32 v4, 7, v4
    v_and_b32 v5, 3, v0
    v_lshl_add_u32 v4, v5, 3, v4
    v_bfe_u32 v5, v0, 3, 2
    v_lshlrev_b32 v5, 5, v5
    """)
    if fx is not None:
        a(f'v_xor_b32 v5, {fx}, v5')
    if add is not None:
        a(f'v_add_u32 v4, {add}, v4')
    for f in range(4):
        if f == 0:
            a(f'v_add_u32 v{vb}, v4, v5')
        else:
            a(f'v_xor_b32 v3, {32*f}, v5\nv_add_u32 v{vb+f}, v4, v3')


def prologue(a, c):
    if c.stamps:
        a('s_memrealtime s[64:65]')
    a(f"""
    s_cmp_ge_u32 s2, 256
    s_cbranch_scc1 L_end
    s_load_dwordx2 s[{X}:{X+1}], s[0:1], 0
    s_load_dwordx2 s[{WG}:{WG+1}], s[0:1], 8
    s_load_dwordx2 s[{WU}:{WU+1}], s[0:1], 16
    s_load_dwordx2 s[{WD}:{WD+1}], s[0:1], 24
    s_load_dwordx2 s[{OUT}:{OUT+1}], s[0:1], 32
    s_load_dwordx2 s[{DBG}:{DBG+1}], s[0:1], 40
    s_load_dwordx2 s[{WS}:{WS+1}], s[0:1], 48
    v_lshrrev_b32 v1, 6, v0
    v_and_b32 v0, 63, v0
    s_and_b32 s18, s2, 7
    v_readfirstlane_b32 s3, v1
    s_lshr_b32 s19, s2, 3
    """)
    for r, sz in ((X, 131072), (WG, WSZ), (WU, WSZ), (WD, WSZ), (OUT, 131072), (WS, WS_SZ), (DBG, 256)):
        a(f's_mov_b32 s{r+2}, {sz}\ns_mov_b32 s{r+3}, 0x00020000')
    if c.stamps:
        for j in range(1, 8):
            a(f's_mov_b64 s[{64+2*j}:{65+2*j}], 0')
    a(f's_mov_b32 s{SPIN}, 0x20000')
    a(f's_lshl_b32 s53, s3, 15')


def ptrs(a, c):
    a('s_waitcnt lgkmcnt(0)')


def epilogue(a, c):
    if c.stamps:
        a(f"""
        s_waitcnt lgkmcnt(0)
        s_add_u32 s{ST}, s{WS}, {STAMP_OFF}
        s_addc_u32 s{ST+1}, s{WS+1}, 0
        s_mov_b32 s{ST+2}, {272*16*64}
        s_mov_b32 s{ST+3}, 0x00020000
        s_lshl_b32 s56, s2, 4
        s_add_u32 s56, s56, s3
        s_lshl_b32 s56, s56, 6
        v_mov_b32 v1, s56
        """)
        for j in range(16):
            a(f'v_mov_b32 v{4+j}, s{64+j}')
        a(f"""
        v_cmp_eq_u32 vcc, 0, v0
        s_and_saveexec_b64 s[58:59], vcc
        buffer_store_dwordx4 v[4:7], v1, {srd(ST)}, 0 offen
        buffer_store_dwordx4 v[8:11], v1, {srd(ST)}, 0 offen offset:16
        buffer_store_dwordx4 v[12:15], v1, {srd(ST)}, 0 offen offset:32
        buffer_store_dwordx4 v[16:19], v1, {srd(ST)}, 0 offen offset:48
        s_waitcnt vmcnt(0)
        """)
    a('L_end:\ns_endpgm')


def p1_setup(a, c):
    a(f"""
    s_lshr_b32 s48, s19, 2
    s_mul_i32 s49, s18, 7
    s_add_u32 s48, s48, s49            ; ct
    s_and_b32 s49, s19, 3              ; m tile
    s_mul_i32 s50, s3, {256*7168}
    s_lshl_b32 s51, s48, 7
    s_add_u32 s50, s50, s51
    s_add_u32 s51, s50, {8*229376}     ; end
    s_mul_i32 s52, s49, {2*229376}
    s_add_u32 s52, s52, s50
    v_lshrrev_b32 v2, 3, v0
    v_mul_u32_u24 v6, 7168, v2
    v_and_b32 v3, 7, v0
    v_bfe_u32 v4, v0, 4, 1
    v_lshlrev_b32 v4, 1, v4
    v_xor_b32 v3, v3, v4
    v_lshl_add_u32 v6, v3, 4, v6
    v_xor_b32 v7, 64, v6
    v_and_b32 v2, 15, v0
    v_lshlrev_b32 v8, 11, v2
    v_lshrrev_b32 v3, 4, v0
    v_lshl_add_u32 v8, v3, 4, v8       ; x voffset
    s_lshl_b32 s54, s49, 15
    s_lshl_b32 s55, s3, 9
    s_add_u32 s54, s54, s55            ; x base
    """)


def p1_dma(a, c, q, step):
    slot = step % 4
    for i4 in range(4):
        if i4:
            a(f's_add_u32 s56, s52, {i4*57344}')
        so = 's56' if i4 else 's52'
        for mat, r in ((0, WG), (1, WU)):
            a(f's_add_u32 m0, s53, {slot*8192 + mat*4096 + i4*1024}')
            a(f's_nop 0')
            a(f'buffer_load_dwordx4 v{6 + (i4 & 1)}, {srd(r)}, {so} offen lds')
    q.add(f'w{step}', 8)
    a('s_add_u32 s52, s52, 229376\ns_cmp_ge_u32 s52, s51\ns_cselect_b32 s52, s50, s52')


def p1_x(a, c, q):
    a('s_lshl_b32 s55, s49, 7')
    for s in range(8):
        a(f's_and_b32 s57, s55, 511\ns_add_u32 s57, s57, s54\ns_add_u32 s55, s55, 64')
        a(f'buffer_load_dwordx4 v[{P1_X+4*s}:{P1_X+4*s+3}], v8, {srd(X)}, s57 offen')
    q.add('x', 8)


def common_setup(a, c):
    a(f"""
    s_lshr_b32 s82, s19, 1             ; nt
    s_and_b32 s83, s19, 1              ; mh
    s_and_b32 s84, s3, 1               ; kh
    s_lshr_b32 s85, s3, 1              ; mf
    s_mul_i32 s80, s18, {448*2048}
    s_lshl_b32 s86, s82, 7
    s_add_u32 s80, s80, s86
    s_mul_i32 s86, s3, {112*2048}
    s_add_u32 s80, s80, s86
    v_lshrrev_b32 v2, 3, v0
    v_lshlrev_b32 v{V_WD}, 11, v2
    v_and_b32 v3, 7, v0
    v_bfe_u32 v4, v0, 4, 2
    v_lshlrev_b32 v4, 1, v4
    v_xor_b32 v3, v3, v4
    v_lshl_add_u32 v{V_WD}, v3, 4, v{V_WD}
    v_lshlrev_b32 v{V_L16}, 4, v0
    v_and_b32 v2, 31, v0
    v_lshlrev_b32 v{V_FO}, 2, v2
    s_lshl_b32 s86, s84, 16
    s_lshl_b32 s87, s84, 6
    """)
    tr_bases(a, V_T2, 2, fx='s87', add='s86')
    a(f"""
    s_lshl_b32 s86, s83, 1
    s_add_u32 s86, s86, s85
    s_mul_i32 s86, s86, 112
    s_mul_i32 s87, s18, 14
    s_add_u32 s86, s86, s87
    s_mul_i32 s87, s84, 7
    s_add_u32 s86, s86, s87
    s_lshl_b32 s88, s86, 10
    s_add_u32 s88, s88, {HOFF}
    s_add_u32 s89, s88, 4096
    s_add_u32 s86, s53, 24576
    v_add_u32 v{V_XW}, s86, v{V_L16}
    s_xor_b32 s86, s86, {R}
    v_add_u32 v{V_XR}, s86, v{V_L16}
    s_lshl_b32 s81, s83, 4
    s_add_u32 s81, s81, s82            ; tile
    s_lshl_b32 s86, s81, 3
    s_lshl_b32 s87, s3, 1
    s_add_u32 s86, s86, s87
    s_lshl_b32 s86, s86, 3
    s_add_u32 s86, s86, s18
    s_lshl_b32 s90, s86, 10
    s_add_u32 s90, s90, {POFF}
    s_add_u32 s91, s90, 8192
    s_lshl_b32 s92, s81, 3
    s_add_u32 s92, s92, s18
    s_lshl_b32 s92, s92, 13
    s_add_u32 s92, s92, {POFF}
    s_add_u32 s93, s92, 4096
    s_lshl_b32 s94, s83, 1
    s_lshr_b32 s95, s18, 2
    s_add_u32 s94, s94, s95
    s_lshl_b32 s94, s94, 15
    s_lshl_b32 s95, s82, 7
    s_add_u32 s94, s94, s95
    s_and_b32 s95, s18, 3
    s_lshl_b32 s95, s95, 5
    s_add_u32 s94, s94, s95
    v_and_b32 v2, 15, v0
    v_lshlrev_b32 v{V_OUT}, 11, v2
    v_lshrrev_b32 v2, 4, v0
    v_lshl_add_u32 v{V_OUT}, v2, 3, v{V_OUT}
    """)


def p1_final_setup(a, c):
    a(f"""
    s_add_u32 s56, s53, 16384
    v_add_u32 v{V_FW}, s56, v{V_L16}
    v_and_b32 v3, 31, v0
    v_lshrrev_b32 v4, 5, v0
    s_lshl_b32 s58, s84, 9
    s_lshl_b32 s59, s85, 11
    s_add_u32 s58, s58, s59
    s_add_u32 s58, s58, 16384
    v_lshlrev_b32 v{V_HS}, 4, v3
    v_lshl_add_u32 v{V_FR0}, v4, 10, v{V_HS}
    v_add_u32 v{V_FR0}, s58, v{V_FR0}
    v_add_u32 v{V_FR1}, {2*R}, v{V_FR0}
    s_mul_i32 s62, s49, 112
    s_lshl_b32 s61, s48, 1
    s_add_u32 s62, s62, s61
    s_add_u32 s62, s62, s85
    s_lshl_b32 s62, s62, 10
    s_lshl_b32 s61, s84, 9
    s_add_u32 s62, s62, s61
    s_add_u32 s62, s62, {HOFF}
    """)


def wd_dma(a, c, q, lo, hi):
    for i in range(lo, hi):
        a(f's_add_u32 m0, s53, {i*1024}')
        a(f's_add_u32 s86, s80, {i*16384}')
        a(f'buffer_load_dwordx4 v{V_WD}, {srd(WD)}, s86 offen lds')
    q.add('wd', hi - lo)


def flag_load(a, q):
    a(f'buffer_load_dword v{V_FL}, v{V_FO}, {srd(DBG)}, 0 offen sc1')
    q.add('fl')


def flag_check(a, c, tag):
    a(f"""
    L_fchk{tag}:
    v_cmp_eq_u32 vcc, 0, v{V_FL}
    s_cbranch_vccz L_fok{tag}
    s_cmp_eq_u32 s{SPIN}, 0
    s_cbranch_scc1 L_fok{tag}
    s_sub_u32 s{SPIN}, s{SPIN}, 1
    buffer_load_dword v{V_FL}, v{V_FO}, {srd(DBG)}, 0 offen sc1
    s_waitcnt vmcnt(0)
    s_branch L_fchk{tag}
    L_fok{tag}:
    """)


def p1_main(a, c, q):
    p1_dma(a, c, q, 0)
    p1_x(a, c, q)
    for s in range(1, 4):
        p1_dma(a, c, q, s)
    stamp(a, c, 1)
    tr_bases(a, 10, 3, add='s53')
    for i in range(32):
        a(f'v_mov_b32 v{P1_A+i}, 0')
    common_setup(a, c)
    p1_final_setup(a, c)
    for s in range(8):
        a(f"s_waitcnt vmcnt({q.wait('x' if s == 0 else f'w{s}')})")
        slot = s % 4
        for mat in range(2):
            for f in range(4):
                for h in range(2):
                    d = P1_B + (mat * 4 + f) * 4 + 2 * h
                    a(f'ds_read_b64_tr_b16 v[{d}:{d+1}], v{10+f} offset:{slot*8192 + mat*4096 + h*512}')
        a('s_waitcnt lgkmcnt(0)')
        if s + 4 < 8:
            p1_dma(a, c, q, s + 4)
        if s == c.wdstep:
            flag_load(a, q)
            wd_dma(a, c, q, 0, 8 if s == 4 else 14)
        if s == 5 and c.wdstep == 4:
            wd_dma(a, c, q, 8, 14)
        for m in range(8):
            acc = P1_A + 4 * m
            b = P1_B + 4 * m
            a(f'v_mfma_f32_16x16x32_bf16 v[{acc}:{acc+3}], v[{b}:{b+3}], v[{P1_X+4*s}:{P1_X+4*s+3}], v[{acc}:{acc+3}]')
    stamp(a, c, 2)


def p1_final(a, c, q):
    a('s_nop 1')
    for m in range(8):
        a(f'ds_write_b128 v{V_FW}, v[{P1_A+4*m}:{P1_A+4*m+3}] offset:{m*1024}')
    a(f"s_waitcnt vmcnt({q.wait('fl')})")
    flag_check(a, c, 'a')
    a('s_waitcnt lgkmcnt(0)\ns_barrier')
    for w in range(4):
        for mat in range(2):
            d = 16 + (mat * 4 + w) * 4
            base = V_FR0 if w < 2 else V_FR1
            a(f'ds_read_b128 v[{d}:{d+3}], v{base} offset:{(w & 1)*R + mat*4096}')
    a('s_waitcnt lgkmcnt(0)')
    for mat in range(2):
        d = 16 + mat * 16
        for r in range(4):
            a(f'v_add_f32 v{d+r}, v{d+r}, v{d+4+r}\nv_add_f32 v{d+8+r}, v{d+8+r}, v{d+12+r}')
        for r in range(4):
            a(f'v_add_f32 v{d+r}, v{d+r}, v{d+8+r}')
    gelu_mul(a, 16, 32, 4, 48)
    a(f"""
    v_min_u32 v16, -2, v16
    v_min_u32 v17, -2, v17
    v_mov_b32 v18, 0
    v_mov_b32 v19, 0
    s_nop 1
    v_permlane32_swap_b32 v16, v18
    v_permlane32_swap_b32 v17, v19
    s_mov_b32 exec_hi, 0
    buffer_store_dwordx4 v[16:19], v{V_HS}, {srd(WS)}, s62 offen sc1
    s_mov_b64 exec, -1
    """)
    q.add('hs')
    stamp(a, c, 3)


def helper(a, c, q):
    a(f"""
    s_sub_u32 s48, s19, 28
    s_lshl_b32 s49, s48, 3
    s_add_u32 s49, s49, s18
    """)
    if c.w3:
        a(f"""
        s_add_u32 s50, s18, 3
        s_and_b32 s50, s50, 7
        s_mul_i32 s51, s18, 7
        s_add_u32 s51, s51, s50
        s_lshl_b32 s51, s51, 7
        s_lshl_b32 s52, s48, 1
        s_add_u32 s52, s52, 1
        s_lshl_b32 s54, s3, 3
        s_add_u32 s52, s52, s54
        s_mul_i32 s52, s52, 229376
        s_add_u32 s51, s51, s52
        v_and_b32 v2, 31, v0
        v_mul_u32_u24 v2, 7168, v2
        """)
    ptrs(a, c)
    if c.w3:
        a(f"""
        s_cmp_eq_u32 s50, 7
        s_cbranch_scc1 L_now3
        s_mov_b32 exec_hi, 0
        buffer_load_dword v8, v2, {srd(WG)}, s51 offen
        buffer_load_dword v9, v2, {srd(WU)}, s51 offen
        s_mov_b64 exec, -1
        L_now3:
        """)
    a(f"""
    s_lshl_b32 s52, s49, 2
    s_add_u32 s52, s52, s3
    s_mul_i32 s52, s52, 20480
    v_lshlrev_b32 v12, 4, v0
    v_mov_b32 v16, -1
    v_mov_b32 v17, -1
    v_mov_b32 v18, -1
    v_mov_b32 v19, -1
    """)
    for i in range(20):
        if i and i % 4 == 0:
            a('s_add_u32 s52, s52, 4096')
        a(f'buffer_store_dwordx4 v[16:19], v12, {srd(WS)}, s52 offen offset:{(i % 4)*1024} sc1')
    q.add('cl', 20)
    stamp(a, c, 1)
    if c.d3:
        a(f"""
        s_lshl_b32 s54, s48, 2
        s_add_u32 s54, s54, s3
        s_lshr_b32 s55, s54, 3
        s_lshl_b32 s55, s55, 10
        s_add_u32 s55, s55, 384
        s_and_b32 s56, s54, 7
        s_mul_i32 s56, s56, {56*2048}
        s_add_u32 s55, s55, s56
        s_mul_i32 s56, s18, {448*2048}
        s_add_u32 s55, s55, s56
        v_min_u32 v2, 55, v0
        v_lshlrev_b32 v2, 11, v2
        buffer_load_dword v10, v2, {srd(WD)}, s55 offen
        """)
        q.add('d3')
    common_setup(a, c)
    a(f"""
    s_waitcnt vmcnt({q.wait('cl')})
    s_barrier
    s_cmp_lg_u32 s3, 0
    s_cbranch_scc1 L_noflag
    s_lshl_b32 s56, s49, 2
    v_mov_b32 v2, 0
    v_mov_b32 v3, 1
    s_mov_b64 exec, 1
    buffer_store_dword v3, v2, {srd(DBG)}, s56 offen sc1
    s_mov_b64 exec, -1
    L_noflag:
    """)
    stamp(a, c, 2)
    if c.dall:
        a(f"""
        s_lshl_b32 s54, s48, 2
        s_add_u32 s54, s54, s3
        s_mul_i32 s55, s54, {28*2048}
        s_mul_i32 s56, s18, {448*2048}
        s_add_u32 s55, s55, s56
        v_lshlrev_b32 v2, 7, v0
        """)
        for i in range(c.dall):
            a(f'buffer_load_dword v11, v2, {srd(WD)}, s55 offen')
            a('s_add_u32 s55, s55, 8192')
    wd_dma(a, c, q, 0, 14)
    flag_load(a, q)
    a('s_waitcnt vmcnt(0)')
    flag_check(a, c, 'b')
    stamp(a, c, 3)


def p2(a, c):
    a('s_barrier')
    stamp(a, c, 4)

    def hl(s):
        so = 's88' if s < 4 else 's89'
        a(f'buffer_load_dwordx4 v[{P2_H+4*s}:{P2_H+4*s+3}], v{V_L16}, {srd(WS)}, {so} offen offset:{(s&3)*1024} sc1')
    for s in range(7):
        hl(s)
    for s in range(7):
        for f in range(4):
            for h in range(2):
                d = P2_W + (s * 4 + f) * 4 + 2 * h
                hs = 2 * s + h
                off = hs * 2048 if hs < 7 else R + (hs - 7) * 2048
                a(f'ds_read_b64_tr_b16 v[{d}:{d+1}], v{V_T2+f} offset:{off}')
    a('s_waitcnt lgkmcnt(0)')
    for s in range(7):
        h = P2_H + 4 * s
        a(f"""
        s_waitcnt vmcnt({6-s})
        L_hchk{s}:
        v_max3_u32 v1, v{h}, v{h+1}, v{h+2}
        v_max_u32 v1, v1, v{h+3}
        v_cmp_eq_u32 vcc, -1, v1
        s_cbranch_vccnz L_hre{s}
        L_hok{s}:
        """)
        for f in range(4):
            acc = P2_A + 4 * f
            w = P2_W + (s * 4 + f) * 4
            src = f'v[{acc}:{acc+3}]' if s else '0'
            a(f'v_mfma_f32_16x16x32_bf16 v[{acc}:{acc+3}], v[{w}:{w+3}], v[{h}:{h+3}], {src}')
    stamp(a, c, 5)
    a(f"""
    s_nop 6
    ds_write_b128 v{V_XW}, v[{P2_A+8}:{P2_A+11}]
    ds_write_b128 v{V_XW}, v[{P2_A+12}:{P2_A+15}] offset:1024
    s_waitcnt lgkmcnt(0)
    s_barrier
    ds_read_b128 v[16:19], v{V_XR}
    ds_read_b128 v[20:23], v{V_XR} offset:1024
    s_waitcnt lgkmcnt(0)
    """)
    for r in range(8):
        a(f'v_add_f32 v{16+r}, v{16+r}, v{P2_A+r}')
    for r in range(8):
        a(f'v_min_u32 v{16+r}, -2, v{16+r}')
    a(f"""
    buffer_store_dwordx4 v[16:19], v{V_L16}, {srd(WS)}, s90 offen sc1
    buffer_store_dwordx4 v[20:23], v{V_L16}, {srd(WS)}, s91 offen sc1
    """)
    stamp(a, c, 6)
    a('s_cmp_lg_u32 s3, 0\ns_cbranch_scc1 L_fin')
    a('L_rld:')
    for j in range(8):
        so = 's92' if j < 4 else 's93'
        a(f'buffer_load_dwordx4 v[{RED+4*j}:{RED+3+4*j}], v{V_L16}, {srd(WS)}, {so} offen offset:{(j&3)*1024} sc1')
    for j in range(0, 8, 2):
        b = RED + 4 * j
        a(f's_waitcnt vmcnt({6-j})')
        if j == 0:
            a(f'v_max3_u32 v1, v{b}, v{b+1}, v{b+2}\nv_max3_u32 v1, v1, v{b+3}, v{b+4}\nv_max3_u32 v1, v1, v{b+5}, v{b+6}\nv_max_u32 v1, v1, v{b+7}')
        else:
            a(f'v_max3_u32 v1, v1, v{b}, v{b+1}\nv_max3_u32 v1, v1, v{b+2}, v{b+3}\nv_max3_u32 v1, v1, v{b+4}, v{b+5}\nv_max3_u32 v1, v1, v{b+6}, v{b+7}')
    a(f"""
    v_cmp_eq_u32 vcc, -1, v1
    s_cbranch_vccz L_rok
    s_max_u32 s{SPIN}, s{SPIN}, 1
    s_sub_u32 s{SPIN}, s{SPIN}, 1
    s_cmp_lg_u32 s{SPIN}, 0
    s_cbranch_scc1 L_rld
    L_rok:
    """)
    for st in (4, 8, 16):
        for b in range(RED, RED + 32, 2 * st):
            for r in range(4):
                a(f'v_add_f32 v{b+r}, v{b+r}, v{b+st+r}')
    a(f"""
    v_cvt_pk_bf16_f32 v{RED}, v{RED}, v{RED+1}
    v_cvt_pk_bf16_f32 v{RED+1}, v{RED+2}, v{RED+3}
    buffer_store_dwordx2 v[{RED}:{RED+1}], v{V_OUT}, {srd(OUT)}, s94 offen
    L_fin:
    """)
    if c.stamps:
        a('s_waitcnt vmcnt(0)')
        stamp(a, c, 7)
    a('s_branch L_epi')
    for s in range(7):
        a(f'L_hre{s}:\ns_cmp_eq_u32 s{SPIN}, 0\ns_cbranch_scc1 L_hok{s}\ns_sub_u32 s{SPIN}, s{SPIN}, 1')
        for t in range(s, 7):
            hl(t)
        a(f's_waitcnt vmcnt({6-s})\ns_branch L_hchk{s}')
    a('L_epi:')


def gen(name, **kw):
    c = Cfg(**kw)
    a = Asm()
    prologue(a, c)
    a('s_cmp_ge_u32 s19, 28\ns_cbranch_scc1 L_helper')
    q = Q()
    p1_setup(a, c)
    ptrs(a, c)
    p1_main(a, c, q)
    p1_final(a, c, q)
    a(f"s_waitcnt vmcnt({q.wait('wd')})\ns_branch L_p2")
    a('L_helper:')
    helper(a, c, Q())
    a('L_p2:')
    p2(a, c)
    epilogue(a, c)
    open(name, 'w').write(single(a.text(), 256, 256, 4 * R, 240, 240, sgpr=100, extra=EXTRA))


if __name__ == '__main__':
    gen('f_a.s')
    gen('f_a_st.s', stamps=True)
    gen('f_now3_st.s', stamps=True, w3=False, d3=False)
    gen('f_dall_st.s', stamps=True, dall=7)
    gen('f_wd5_st.s', stamps=True, wdstep=5)
```
